```python
import torch

def _softmax(x, axis=-1):
    return torch.softmax(x, dim=axis)
def _gelu(x):
    return torch.nn.functional.gelu(x, approximate="tanh")
def _silu(x):
    return torch.nn.functional.silu(x)
def _sigmoid(x):
    return torch.sigmoid(x)
def _layernorm(x, axis=-1, eps=1e-5):
    m = x.mean(dim=axis, keepdim=True)
    v = x.var(dim=axis, keepdim=True, unbiased=False)
    return (x - m) / torch.sqrt(v + eps)
def _scatter_add(tgt, idx, src, axis=0):
    return tgt.clone().index_add_(axis, idx, src)
def _segment_sum(src, seg, n):
    out = torch.zeros((n,) + src.shape[1:], dtype=src.dtype)
    return out.index_add_(0, seg, src)
def _pad(x, pw):
    flat = tuple(v for pair in reversed(pw) for v in pair)
    return torch.nn.functional.pad(x, flat)

kernel_name = 'standalone__layernorm_linear__sampling'

def setup_inputs():

    _w = (lambda a: (lambda t: t.to(torch.bfloat16) if t.is_floating_point() else t)(torch.as_tensor(a)))
    B, S, D = 1024, 32, 448
    return {
        "x": _w((lambda *s: torch.randn(*s, dtype=torch.bfloat16) * 0.05)(B, S, D)),
        "g": _w((lambda *s: torch.randn(*s, dtype=torch.bfloat16) * 0.05)(D) + 1.0),
        "b": _w((lambda *s: torch.randn(*s, dtype=torch.bfloat16) * 0.4)(D)),
        "w": _w((lambda *s: torch.randn(*s, dtype=torch.bfloat16) * 0.05)(D, D)),
    }

def reference(x, g, b, w):
    return (_layernorm(x, axis=-1) * g + b) @ w
```

```python
KNAME = "standalone__layernorm_linear__sampling_kernel"

HEADER = """; Kernarg layout for this problem (56 bytes, ptrs only, base s[0:1]):
;   offset   0: d_in[0] x  shape=(1024, 32, 448) dtype=bfloat16
;   offset   8: d_in[1] g  shape=(448,) dtype=bfloat16
;   offset  16: d_in[2] b  shape=(448,) dtype=bfloat16
;   offset  24: d_in[3] w  shape=(448, 448) dtype=bfloat16
;   offset  32: d_out     shape=(1024, 32, 448) dtype=bfloat16
;   offset  40: d_debug   256 bytes
;   offset  48: d_ws      268435456 bytes workspace
; @launch grid=(%d,1,1) block=(%d,1,1) lds=%d
.amdgcn_target "amdgcn-amd-amdhsa--gfx950"
.text
.globl KNAME
.p2align 8
.type KNAME,@function
KNAME:
""".replace("KNAME", KNAME)

FOOTER = """.section .rodata,"a"
.p2align 6
.amdhsa_kernel KNAME
  .amdhsa_next_free_vgpr %d
  .amdhsa_next_free_sgpr %d
  .amdhsa_accum_offset %d
  .amdhsa_group_segment_fixed_size 0
  .amdhsa_kernarg_size 56
  .amdhsa_user_sgpr_count 2
  .amdhsa_user_sgpr_kernarg_segment_ptr 1
  .amdhsa_system_sgpr_workgroup_id_x 1
.end_amdhsa_kernel
""".replace("KNAME", KNAME)

class Asm:
    def __init__(self):
        self.lines = []
    def __call__(self, s):
        self.lines.append("    " + s)
    def label(self, s):
        self.lines.append(s + ":")
    def comment(self, s):
        self.lines.append("    ; " + s)
    def text(self, grid, block, lds, nvgpr=512, nsgpr=102, accum=256):
        return HEADER % (grid, block, lds) + "\n".join(self.lines) + "\n" + FOOTER % (nvgpr, nsgpr, accum)

def vr(base, n=1, kind="v"):
    if n == 1:
        return "%s%d" % (kind, base)
    return "%s[%d:%d]" % (kind, base, base + n - 1)

def ur(idx, n=1):
    if idx >= 256:
        return vr(idx - 256, n, "a")
    assert idx + n <= 256
    return vr(idx, n, "v")
```

```python
import re

class Ins:
    __slots__ = ("text", "kind", "tag", "need", "rd", "wr", "op")
    def __init__(self, text, tag=None, need=()):
        self.text = text
        self.tag = tag
        self.need = list(need) if not isinstance(need, str) else [need]
        self.op = text.split()[0]
        self.kind = classify(self.op)
        self.rd, self.wr = operands(text)

def classify(op):
    if op.startswith("v_mfma"): return "mfma"
    if op.startswith("buffer_") or op.startswith("global_"): return "vmem"
    if op.startswith("ds_"): return "ds"
    if op.startswith("s_load") or op.startswith("s_mem"): return "smem"
    if op.startswith("v_"): return "valu"
    if op.startswith("s_"): return "salu"
    raise ValueError(op)

REG = re.compile(r"^-?(?:abs\()?([vas])(?:(\d+)|\[(\d+):(\d+)\])\)?$")
def regs(tok):
    tok = tok.strip()
    if tok in ("vcc", "exec", "m0", "scc"): return {tok}
    m = REG.match(tok)
    if not m: return set()
    k = m.group(1)
    if m.group(2) is not None: return {k + m.group(2)}
    return {k + str(i) for i in range(int(m.group(3)), int(m.group(4)) + 1)}

def operands(text):
    parts = text.split(None, 1)
    op = parts[0]
    if len(parts) == 1: return set(), set()
    toks = [t.strip() for t in parts[1].split(",")]
    ops = []
    for t in toks:
        ops.append(t.split()[0] if t else t)
    rd, wr = set(), set()
    mods = parts[1]
    if op.startswith("buffer_store") or op.startswith("ds_write") or op.startswith("global_store"):
        for t in ops: rd |= regs(t)
    elif op.startswith("buffer_load") and re.search(r"\blds\b", mods):
        for t in ops: rd |= regs(t)
        rd.add("m0")
    elif op.startswith("s_cmp") or op.startswith("s_waitcnt") or op.startswith("s_nop") or op.startswith("s_barrier") or op.startswith("s_cbranch") or op.startswith("s_branch") or op.startswith("s_setprio") or op.startswith("s_sleep"):
        for t in ops: rd |= regs(t)
    else:
        wr |= regs(ops[0])
        for t in ops[1:]: rd |= regs(t)
        if op.startswith("v_fmac") or op.startswith("v_dot2c") or "_dpp" in op or op.startswith("v_permlane") or op.startswith("v_pk_fmac"):
            rd |= regs(ops[0])
        if op.startswith("v_permlane"):
            wr |= regs(ops[1])
    return rd, wr

TRANS = ("v_exp_f32", "v_log_f32", "v_rcp_f32", "v_rsq_f32", "v_sqrt_f32")

def mfma_parts(text):
    toks = [t.strip().split()[0] for t in text.split(None, 1)[1].split(",")]
    return regs(toks[0]), regs(toks[1]), regs(toks[2]), regs(toks[3])

def required_gap(p, c):
    g = 0
    pw, cr, cw = p.wr, c.rd, c.wr
    vw = {r for r in pw if r[0] in "va" and r not in ("vcc",)}
    sw = {r for r in pw if r[0] == "s" or r in ("vcc",)}
    if p.kind == "valu":
        isdot = p.op.startswith("v_dot")
        if vw & cr:
            if "_dpp" in c.op: g = max(g, 2)
            if c.op.startswith("v_permlane"): g = max(g, 2)
            if c.kind == "mfma": g = max(g, 2)
            if c.op.startswith("v_readfirstlane") or c.op.startswith("v_readlane"): g = max(g, 1)
            if p.op.startswith(TRANS) and c.kind == "valu" and not c.op.startswith(TRANS): g = max(g, 1)
            if "op_sel" in p.text and False: g = max(g, 1)
        if isdot and (vw & (cr | cw)):
            pop = p.op.replace("_e32", "").replace("_e64", ""); cop = c.op.replace("_e32", "").replace("_e64", "")
            if pop == cop:
                toks = [t.strip().split()[0] for t in c.text.split(None, 1)[1].split(",")]
                ab = set()
                for t in toks[1:3]: ab |= regs(t)
                if vw & ab: g = max(g, 3)
            else:
                g = max(g, 3)
        if sw & cr:
            if c.kind == "vmem": g = max(g, 5)
            if c.kind == "valu": g = max(g, 2)
            if c.kind == "salu": g = max(g, 1)
        if "exec" in pw:
            g = max(g, 5)
    if p.kind == "salu":
        if "m0" in pw and "m0" in cr and c.kind in ("vmem", "ds"): g = max(g, 1)
    if p.kind == "mfma":
        d, a_, b_, cc = mfma_parts(p.text)
        passes = 8 if "32x32" in p.op else 4
        if c.kind == "mfma":
            d2, a2, b2, c2 = mfma_parts(c.text)
            if d & (a2 | b2): g = max(g, {4: 8, 8: 12}[passes])
            if d & c2 and not (d == c2 and p.op == c.op): g = max(g, {4: 6, 8: 10}[passes])
            if d & d2 and not (d & c2): g = max(g, {4: 8, 8: 12}[passes])
        elif c.kind in ("valu", "vmem", "ds"):
            if d & (cr | cw): g = max(g, {4: 8, 8: 12}[passes])
            if c.kind == "valu" and (cc & cw): g = max(g, {4: 3, 8: 7}[passes])
    if p.kind == "vmem" and (p.op.endswith("x4") or p.op.endswith("x3")) and "store" in p.op:
        data = regs(p.text.split(None, 1)[1].split(",")[0 if p.op.startswith("buffer") else 1])
        if data & cw: g = max(g, 2)
    return g

def states(ins):
    if ins.op == "s_nop": return int(ins.text.split()[1]) + 1
    return 1

def linearize(stream, verbose=False):
    out = []
    vm, lg = [], []
    vm_done, lg_done = set(), set()
    alltags = set()
    smem_pending = False
    for ins in stream:
        nv = nl = None
        for t in ins.need:
            if t in vm_done or t in lg_done: continue
            if t in vm:
                idx = len(vm) - 1 - vm[::-1].index(t)
                n = len(vm) - 1 - idx
                nv = n if nv is None else min(nv, n)
            elif t in lg:
                idx = len(lg) - 1 - lg[::-1].index(t)
                n = len(lg) - 1 - idx
                nl = n if nl is None else min(nl, n)
            elif t == "ALLVM":
                if vm: nv = 0
            elif t == "ALLLG":
                if lg or smem_pending: nl = 0
            else:
                raise ValueError("unknown tag %r needed by %s" % (t, ins.text))
        if nl is not None and smem_pending: nl = 0
        if nv is not None or nl is not None:
            w = "s_waitcnt"
            if nv is not None:
                nv = min(nv, 63)
                w += " vmcnt(%d)" % nv
                done = vm[:len(vm) - nv]; vm = vm[len(vm) - nv:]
                vm_done |= {t for t in done if t is not None and t not in vm}
            if nl is not None:
                nl = min(nl, 15)
                w += " lgkmcnt(%d)" % nl
                done = lg[:len(lg) - nl]; lg = lg[len(lg) - nl:]
                lg_done |= {t for t in done if t is not None and t not in lg}
                if nl == 0: smem_pending = False
            out.append(Ins(w))
        dist = 0; pad = 0
        for p in reversed(out[-24:]):
            g = required_gap(p, ins)
            if g > dist: pad = max(pad, g - dist)
            dist += states(p)
            if dist >= 20: break
        while pad > 0:
            n = min(pad, 16)
            out.append(Ins("s_nop %d" % (n - 1))); pad -= n
        out.append(ins)
        if ins.kind == "vmem":
            vm.append(ins.tag); vm_done.discard(ins.tag)
        elif ins.kind == "ds":
            lg.append(ins.tag); lg_done.discard(ins.tag)
        elif ins.kind == "smem":
            lg.append(ins.tag); smem_pending = True
    return out

def merge(main, fill, start=0, end=None):
    if end is None: end = len(main)
    out = list(main[:start])
    n = end - start; m = len(fill)
    j = 0
    for i in range(n):
        out.append(main[start + i])
        while j < m and (j + 1) * n <= (i + 1) * m:
            out.append(fill[j]); j += 1
    out += fill[j:]
    out += main[end:]
    return out
```

```python
import sys, struct
from asmlib import *
from sched import Ins, linearize, merge

def f32(x): return "0x%08x" % struct.unpack("<I", struct.pack("<f", x))[0]

ATILE = 14336
STG = 114688
OSTR = 912
OSLOT = 16 * OSTR

V_X16, V_X8 = 1, 2
V_WD = 3
V_TR = 7
V_AW, V_AWT = 8, 9
V_ARE, V_ARO = 10, 11
V_OW, V_RB, V_RBT = 12, 13, 14
V_EPS = 15
V_G, V_B, V_D = 16, 44, 72
V_S, V_M, V_V, V_V2, V_R = 100, 101, 102, 104, 106
V_XR = 116
ACC = (16, 44)
V_XF = 72
V_P = 88
V_O = 102

def wreg(s, j, lo=0, n=4):
    f = 7 * s + j
    base = 256 + 4 * f if f < 63 else 116 + 4 * (f - 63)
    return ur(base + lo, n)

class G:
    def __init__(self, opt):
        self.o = opt

    def prologue(self):
        o = self.o
        L = []
        I = lambda t, **k: L.append(Ins(t, **k))
        I("s_load_dwordx4 s[4:7], s[0:1], 0", tag="ka")
        I("s_load_dwordx4 s[8:11], s[0:1], 16", tag="ka")
        I("s_load_dwordx2 s[12:13], s[0:1], 32", tag="ka")
        if o.get("stamps"):
            I("s_load_dwordx2 s[14:15], s[0:1], 48", tag="ka")
        I("v_lshrrev_b32 v15, 6, v0")
        I("v_and_b32 v0, 63, v0")
        I("v_readfirstlane_b32 s3, v15")
        I("v_lshrrev_b32 v100, 4, v0")
        I("v_and_b32 v101, 15, v0")
        I("v_mul_u32_u24 v102, 896, v100")
        I("v_lshl_add_u32 v%d, v101, 4, v102" % V_X16)
        I("v_lshl_add_u32 v%d, v101, 3, v102" % V_X8)
        I("v_add_u32 v%d, 768, v%d" % (V_X8, V_X8))
        I("s_lshl_b32 s36, s2, 5")
        I("s_add_u32 s36, s36, s3")
        I("s_mul_i32 s36, s36, %d" % (4 * 896))
        I("s_mov_b32 s16, s4", need="ka")
        I("s_mov_b32 s17, s5")
        I("s_mov_b32 s18, %d" % (32768 * 896))
        I("s_mov_b32 s19, 0x20000")
        I("s_mov_b32 s20, s10")
        I("s_mov_b32 s21, s11")
        I("s_mov_b32 s22, %d" % (448 * 896))
        I("s_mov_b32 s23, 0x20000")
        self.pro_a = L
        L = []
        I = lambda t, **k: L.append(Ins(t, **k))
        if o.get("wpf", True):
            I("s_lshr_b32 s37, s2, 3")
            I("s_and_b32 s37, s37, 31")
            I("s_mul_i32 s37, s37, 98")
            I("s_mul_i32 s39, s3, 25")
            I("s_add_u32 s37, s37, s39")
            I("v_min_u32 v103, 24, v0")
            I("v_add_u32 v103, s37, v103")
            I("v_lshlrev_b32 v103, 7, v103")
            I("buffer_load_dword v108, v103, s[20:23], 0 offen")
        self.pro_pf = L
        L = []
        I = lambda t, **k: L.append(Ins(t, **k))
        I("s_mul_i32 s39, s3, 224")
        for par in (0, 1):
            if par == 0:
                I("v_mov_b32 v103, v0")
            else:
                I("v_subrev_u32 v103, 8, v0")
            I("v_cmp_gt_u32 vcc, 56, v103")
            I("v_mul_u32_u24 v104, 4682, v103")
            I("v_lshrrev_b32 v104, 16, v104")
            I("v_mul_u32_u24 v105, %d, v104" % (896 - 14 * 16))
            I("v_lshl_add_u32 v105, v103, 4, v105")
            I("v_add_u32 v105, s39, v105")
            I("v_mov_b32 v104, 0x40000000")
            I("v_cndmask_b32 v%d, v104, v105, vcc" % (V_WD + par))
            if par == 1:
                I("v_add_u32 v%d, 6144, v%d" % (V_WD + 1, V_WD + 1))
        I("v_add_u32 v%d, %d, v%d" % (V_WD + 2, 2 * 6144, V_WD))
        I("v_add_u32 v%d, %d, v%d" % (V_WD + 3, 2 * 6144, V_WD + 1))
        I("s_mul_i32 s38, s3, 12288")
        I("s_add_u32 s38, s38, %d" % STG)
        self.pro_w = L
        L = []
        I = lambda t, **k: L.append(Ins(t, **k))
        I("s_mov_b32 s28, s6"); I("s_mov_b32 s29, s7"); I("s_mov_b32 s30, 896"); I("s_mov_b32 s31, 0x20000")
        I("s_mov_b32 s32, s8"); I("s_mov_b32 s33, s9"); I("s_mov_b32 s34, 896"); I("s_mov_b32 s35, 0x20000")
        I("v_lshlrev_b32 v103, 4, v101")
        I("v_lshlrev_b32 v104, 3, v101")
        for (srd, base) in (("s[28:31]", V_D), ("s[32:35]", V_D + 14)):
            for i in range(3):
                I("buffer_load_dwordx4 %s, v103, %s, 0 offen offset:%d" % (vr(base + 4 * i, 4), srd, 256 * i), tag="gb")
            I("buffer_load_dwordx2 %s, v104, %s, 0 offen offset:768" % (vr(base + 12, 2), srd), tag="gb")
        self.pro_gb = L
        L = []
        I = lambda t, **k: L.append(Ins(t, **k))
        I("s_mov_b32 s24, s12"); I("s_mov_b32 s25, s13"); I("s_mov_b32 s26, %d" % (32768 * 896)); I("s_mov_b32 s27, 0x20000")
        I("s_mov_b32 s40, 0x3f803f80")
        I("s_mov_b32 s41, 0x00003f80")
        I("s_mov_b32 s42, 0x3f800000")
        I("s_mov_b32 s43, %s" % f32(-1.0 / 448))
        I("s_mov_b32 s44, %s" % f32(1.0 / 448))
        I("v_mov_b32 v%d, %s" % (V_EPS, f32(1e-5)))
        I("v_lshlrev_b32 v103, 10, v100")
        I("v_and_b32 v104, 1, v100")
        I("v_lshl_add_u32 v103, v104, 7, v103")
        I("v_bfe_u32 v104, v0, 2, 2")
        I("v_mul_u32_u24 v104, 224, v104")
        I("v_and_b32 v105, 3, v0")
        I("v_lshl_add_u32 v104, v105, 3, v104")
        I("v_add3_u32 v%d, v103, v104, s38" % V_TR)
        I("s_lshl_b32 s39, s3, 2")
        I("v_add_u32 v103, s39, v100")
        I("v_and_b32 v104, 7, v101")
        I("v_xor_b32 v104, v104, v103")
        I("v_and_b32 v105, 3, v101")
        I("v_lshl_add_u32 v104, v105, 4, v104")
        I("v_lshlrev_b32 v104, 4, v104")
        I("v_lshrrev_b32 v105, 2, v101")
        I("v_lshl_add_u32 v%d, v105, 10, v104" % V_AW)
        I("v_lshrrev_b32 v104, 1, v101")
        I("v_xor_b32 v105, v104, v103")
        I("v_and_b32 v104, 3, v104")
        I("v_lshl_add_u32 v105, v104, 4, v105")
        I("v_lshlrev_b32 v105, 4, v105")
        I("v_lshrrev_b32 v104, 3, v101")
        I("v_lshl_add_u32 v105, v104, 10, v105")
        I("v_and_b32 v104, 1, v101")
        I("v_lshl_add_u32 v105, v104, 3, v105")
        I("v_add_u32 v%d, %d, v105" % (V_AWT, 12 * 1024))
        I("v_mul_u32_u24 v103, %d, v103" % OSTR)
        I("v_add_u32 v103, %d, v103" % STG)
        I("v_lshl_add_u32 v%d, v101, 4, v103" % V_RB)
        I("v_lshl_add_u32 v%d, v101, 3, v103" % V_RBT)
        I("v_add_u32 v%d, 768, v%d" % (V_RBT, V_RBT))
        I("v_xor_b32 v103, v100, v101")
        I("v_lshl_add_u32 v103, v100, 4, v103")
        I("v_lshlrev_b32 v%d, 4, v103" % V_ARE)
        I("v_xor_b32 v%d, 64, v%d" % (V_ARO, V_ARE))
        I("v_mul_u32_u24 v103, %d, v101" % OSTR)
        I("v_lshl_add_u32 v103, v100, 3, v103")
        I("s_mul_i32 s39, s3, 224")
        I("s_add_u32 s39, s39, %d" % STG)
        I("v_add_u32 v%d, s39, v103" % V_OW)
        self.pro_addr = L
        L = []
        I = lambda t, **k: L.append(Ins(t, **k))
        first = True
        for (src, dst) in ((V_D, V_G), (V_D + 14, V_B)):
            for i in range(14):
                I("v_lshlrev_b32 v%d, 16, v%d" % (dst + 2 * i, src + i), need="gb" if first else ())
                first = False
                I("v_and_b32 v%d, 0xffff0000, v%d" % (dst + 2 * i + 1, src + i))
        self.pro_unpack = L

    def xb(self, p): return V_XR + 14 * (p % self.o.get("xring", 4))

    def xload(self, p):
        xb = self.xb(p); f = self.o.get("ldx", "")
        L = [Ins("s_add_u32 s45, s36, %d" % (p * 16 * 896))]
        for i in range(3):
            L.append(Ins("buffer_load_dwordx4 %s, v%d, s[16:19], s45 offen offset:%d %s" % (vr(xb + 4 * i, 4), V_X16, 256 * i, f), tag=("x", p)))
        L.append(Ins("buffer_load_dwordx2 %s, v%d, s[16:19], s45 offen %s" % (vr(xb + 12, 2), V_X8, f), tag=("x", p)))
        return L

    def ln(self, p):
        xb = self.xb(p)
        L = []
        I = lambda t, **k: L.append(Ins(t, **k))
        I("v_mov_b32 v%d, 0" % V_S)
        for i in range(14):
            I("v_dot2c_f32_bf16 v%d, s40, v%d" % (V_S, xb + i), need=[("x", p)] if i == 0 else ())
        for rot in (8, 4, 2, 1):
            I("v_add_f32_dpp v%d, v%d, v%d row_ror:%d row_mask:0xf bank_mask:0xf" % (V_S, V_S, V_S, rot))
        I("v_mul_f32 v%d, s43, v%d" % (V_M, V_S))
        for i in range(14):
            I("v_dot2_f32_bf16 v%d, v%d, s41, v%d" % (V_D + 2 * i, xb + i, V_M))
            I("v_dot2_f32_bf16 v%d, v%d, s42, v%d" % (V_D + 2 * i + 1, xb + i, V_M))
        for i in range(14):
            d = vr(V_D + 2 * i, 2); v = vr(V_V if i % 2 == 0 else V_V2, 2)
            if i < 2: I("v_pk_mul_f32 %s, %s, %s" % (v, d, d))
            else: I("v_pk_fma_f32 %s, %s, %s, %s" % (v, d, d, v))
        I("v_pk_add_f32 %s, %s, %s" % (vr(V_V, 2), vr(V_V, 2), vr(V_V2, 2)))
        I("v_add_f32 v%d, v%d, v%d" % (V_V, V_V, V_V + 1))
        for rot in (8, 4, 2, 1):
            I("v_add_f32_dpp v%d, v%d, v%d row_ror:%d row_mask:0xf bank_mask:0xf" % (V_V, V_V, V_V, rot))
        I("v_fma_f32 v%d, v%d, s44, v%d" % (V_V, V_V, V_EPS))
        I("v_rsq_f32 v%d, v%d" % (V_R, V_V))
        toff = (p % 4) * ATILE
        for i in range(14):
            d = vr(V_D + 2 * i, 2)
            I("v_pk_mul_f32 %s, %s, %s op_sel_hi:[1,0]" % (d, d, vr(V_R, 2)))
        for i in range(14):
            d = vr(V_D + 2 * i, 2)
            I("v_pk_fma_f32 %s, %s, %s, %s" % (d, d, vr(V_G + 2 * i, 2), vr(V_B + 2 * i, 2)))
        for i in range(14):
            I("v_cvt_pk_bf16_f32 v%d, v%d, v%d" % (xb + i, V_D + 2 * i, V_D + 2 * i + 1))
            if i % 4 == 3:
                I("ds_write_b128 v%d, %s offset:%d" % (V_AW, vr(xb + i - 3, 4), toff + 4096 * (i // 4)), tag=("aw", p))
        I("ds_write_b64 v%d, %s offset:%d" % (V_AWT, vr(xb + 12, 2), toff), tag=("aw", p))
        if p == 3:
            I("v_add_u32 v%d, %d, v%d" % (V_AW, 4 * ATILE, V_AW))
            I("v_add_u32 v%d, %d, v%d" % (V_AWT, 4 * ATILE, V_AWT))
        return L

    def wissue(self, hb):
        s, h = hb // 2, hb % 2
        slot = hb % 3
        L = [Ins("s_add_u32 m0, s38, %d" % (slot * 4096), need=[("tr", hb - 3)] if hb >= 3 else ()),
             Ins("s_mov_b32 s37, %d" % ((32 * s + 4 * h) * 896))]
        for g in range(4):
            L.append(Ins("buffer_load_dwordx4 v%d, s[20:23], s37 offen offset:%d lds" % (V_WD + g, g * 1024), tag=("w", hb)))
        return L

    def wcons(self, hb):
        s, h = hb // 2, hb % 2
        slot = hb % 3
        return [Ins("ds_read_b64_tr_b16 %s, v%d offset:%d" % (wreg(s, j, 2 * h, 2), V_TR, slot * 4096 + 32 * j),
                    tag=("tr", hb), need=[("w", hb)] if j == 0 else ()) for j in range(7)]

    def xfread(self, t, s):
        n = t * 14 + s
        return Ins("ds_read_b128 %s, v%d offset:%d" % (vr(V_XF + 4 * (n % 4), 4), V_ARO if s % 2 else V_ARE, (t % 4) * ATILE + s * 1024), tag=("xf", n))

    def mfmas(self, t, s):
        n = t * 14 + s
        acc = ACC[t % 2]
        L = []
        for j in range(7):
            c = "0" if s == 0 else vr(acc + 4 * j, 4)
            need = [("xf", n)] if j == 0 else []
            L.append(Ins("v_mfma_f32_16x16x32_bf16 %s, %s, %s, %s" % (vr(acc + 4 * j, 4), wreg(s, j), vr(V_XF + 4 * (n % 4), 4), c), need=need))
        return L

    def epi1(self, t):
        acc = ACC[t % 2]; slot = t % 2
        L = []
        for j in range(7):
            L.append(Ins("v_cvt_pk_bf16_f32 v%d, v%d, v%d" % (V_P + 2 * j, acc + 4 * j, acc + 4 * j + 1)))
            L.append(Ins("v_cvt_pk_bf16_f32 v%d, v%d, v%d" % (V_P + 2 * j + 1, acc + 4 * j + 2, acc + 4 * j + 3)))
            L.append(Ins("ds_write_b64 v%d, %s offset:%d" % (V_OW, vr(V_P + 2 * j, 2), slot * OSLOT + 32 * j), tag=("ow", t)))
        return L

    def epi2(self, t):
        slot = t % 2; f = self.o.get("st", "")
        L = [Ins("s_barrier", need=[("ow", t)])]
        for i in range(3):
            L.append(Ins("ds_read_b128 %s, v%d offset:%d" % (vr(V_O + 4 * i, 4), V_RB, slot * OSLOT + 256 * i), tag=("rb", t, i)))
        L.append(Ins("ds_read_b64 %s, v%d offset:%d" % (vr(V_O + 12, 2), V_RBT, slot * OSLOT), tag=("rb", t, 3)))
        return L

    def epi3(self, t):
        f = self.o.get("st", "")
        L = [Ins("s_add_u32 s45, s36, %d" % (t * 16 * 896))]
        for i in range(3):
            L.append(Ins("buffer_store_dwordx4 %s, v%d, s[24:27], s45 offen offset:%d %s" % (vr(V_O + 4 * i, 4), V_X16, 256 * i, f), need=[("rb", t, i)], tag=("st", t)))
        L.append(Ins("buffer_store_dwordx2 %s, v%d, s[24:27], s45 offen %s" % (vr(V_O + 12, 2), V_X8, f), need=[("rb", t, 3)], tag=("st", t)))
        return L

    def stamp(self, i):
        if not self.o.get("stamps"): return []
        return [Ins("s_memrealtime s[%d:%d]" % (60 + 2 * i, 61 + 2 * i), tag=("stamp", i))]

    def build(self):
        o = self.o
        self.prologue()
        S = []
        S += self.stamp(0)
        S += self.pro_a
        S += self.xload(0)
        S += self.pro_pf + self.pro_w
        S += self.pro_gb
        S += self.wissue(0) + self.xload(1) + self.wissue(1) + self.wissue(2) + self.xload(2)
        S += self.pro_addr + self.pro_unpack
        hb = 0
        nA = 18
        for p in range(8):
            body = self.ln(p)
            fill = []
            k = (nA * (p + 1)) // 8 - (nA * p) // 8
            groups = []
            for _ in range(k):
                groups.append(self.wcons(hb) + (self.wissue(hb + 3) if hb + 3 < 28 else []))
                hb += 1
            n = len(body)
            pos = [(i + 1) * n // (k + 1) for i in range(k)]
            out = []
            gi = 0
            for i, ins in enumerate(body):
                while gi < k and pos[gi] == i:
                    out += groups[gi]; gi += 1
                out.append(ins)
            S += out
            if p + 3 < 8: S += self.xload(p + 3)
        S += self.stamp(1)
        while hb < 28:
            S += self.wcons(hb) + (self.wissue(hb + 3) if hb + 3 < 28 else [])
            hb += 1
        S += [Ins("s_barrier", need=["ALLLG"])]
        S += self.stamp(2)
        PF = 3
        for s in range(PF): S.append(self.xfread(0, s))
        for t in range(8):
            main = []
            for s in range(14):
                m = self.mfmas(t, s)
                n = t * 14 + s + PF
                if n < 8 * 14:
                    tt, ss = divmod(n, 14)
                    extra = []
                    if tt == 4 and ss == 0:
                        extra.append(Ins("v_add_u32 v%d, %d, v%d" % (V_ARE, 4 * ATILE, V_ARE)))
                    if tt == 4 and ss == 1:
                        extra.append(Ins("v_add_u32 v%d, %d, v%d" % (V_ARO, 4 * ATILE, V_ARO)))
                    extra.append(self.xfread(tt, ss))
                    m = m[:1] + extra + m[1:]
                main += m
            if t > 0:
                n = len(main)
                main = merge(main, self.epi3(t - 1), int(n * 0.62), int(n * 0.85))
                main = merge(main, self.epi2(t - 1), int(n * 0.45), int(n * 0.55))
                main = merge(main, self.epi1(t - 1), 8, int(n * 0.35))
            S += main
        S += self.epi1(7) + self.epi2(7) + self.epi3(7)
        S += self.stamp(3)
        if o.get("stamps"):
            S += [Ins("s_nop 0", need=["ALLVM"])]
            S += self.stamp(4)
            S += [Ins("s_mov_b32 s28, s14", need=["ALLLG"]), Ins("s_mov_b32 s29, s15"), Ins("s_mov_b32 s30, 0x100000"), Ins("s_mov_b32 s31, 0x20000")]
            for i in range(8):
                S += [Ins("v_mov_b32 v%d, s%d" % (16 + 2 * i, 60 + 2 * min(i, 4))), Ins("v_mov_b32 v%d, s%d" % (17 + 2 * i, 61 + 2 * min(i, 4)))]
            S += [Ins("s_lshl_b32 s39, s2, 2"), Ins("s_add_u32 s39, s39, s3"), Ins("s_lshl_b32 s39, s39, 6"), Ins("v_mov_b32 v1, s39"), Ins("s_mov_b64 exec, 1")]
            for i in range(4):
                S.append(Ins("buffer_store_dwordx4 v[%d:%d], v1, s[28:31], 0 offen offset:%d" % (16 + 4 * i, 19 + 4 * i, 16 * i)))
        lin = linearize(S)
        a = Asm()
        a("s_cmp_ge_u32 s2, 256")
        a("s_cbranch_scc1 L_end")
        for i in lin: a(i.text)
        a.label("L_end")
        a("s_endpgm")
        return a.text(256, 256, 163840)

if __name__ == "__main__":
    import json
    opt = json.loads(sys.argv[2]) if len(sys.argv) > 2 else {}
    open(sys.argv[1], "w").write(G(opt).build())
```

```python
import sys, struct
from asmlib import *
from sched import Ins, linearize, merge

def f32(x): return "0x%08x" % struct.unpack("<I", struct.pack("<f", x))[0]

ATILE = 14336
STG = 114688
OSTR = 912
OSLOT = 16 * OSTR

V_X16, V_X8 = 1, 2
V_WD = 3
V_TR = 7
V_AW, V_AWT = 8, 9
V_ARE, V_ARO = 10, 11
V_OW, V_RB, V_RBT = 12, 13, 14
V_EPS = 15
V_G, V_B, V_D = 16, 44, 72
V_S, V_M, V_V, V_V2, V_R = 100, 101, 102, 104, 106
V_XR = 116
ACC = (16, 44)
V_XF = 72
V_P = 88
V_O = 102

def wreg(s, j, lo=0, n=4):
    f = 7 * s + j
    base = 256 + 4 * f if f < 63 else 116 + 4 * (f - 63)
    return ur(base + lo, n)

class G:
    def __init__(self, opt):
        self.o = opt

    def prologue(self):
        o = self.o
        L = []
        I = lambda t, **k: L.append(Ins(t, **k))
        I("s_load_dwordx4 s[4:7], s[0:1], 0", tag="ka")
        I("s_load_dwordx4 s[8:11], s[0:1], 16", tag="ka")
        I("s_load_dwordx2 s[12:13], s[0:1], 32", tag="ka")
        if o.get("stamps"):
            I("s_load_dwordx2 s[14:15], s[0:1], %d" % (40 if o.get("dbg") else 48), tag="ka")
        I("v_lshrrev_b32 v15, 6, v0")
        I("v_and_b32 v0, 63, v0")
        I("v_readfirstlane_b32 s3, v15")
        I("v_lshrrev_b32 v100, 4, v0")
        I("v_and_b32 v101, 15, v0")
        I("v_mul_u32_u24 v102, 896, v100")
        I("v_lshl_add_u32 v%d, v101, 4, v102" % V_X16)
        I("v_lshl_add_u32 v%d, v101, 3, v102" % V_X8)
        I("v_add_u32 v%d, 768, v%d" % (V_X8, V_X8))
        I("s_lshl_b32 s36, s2, 5")
        I("s_add_u32 s36, s36, s3")
        I("s_mul_i32 s36, s36, %d" % (4 * 896))
        I("s_mov_b32 s16, s4", need="ka")
        I("s_mov_b32 s17, s5")
        I("s_mov_b32 s18, %d" % (32768 * 896))
        I("s_mov_b32 s19, 0x20000")
        I("s_mov_b32 s20, s10")
        I("s_mov_b32 s21, s11")
        I("s_mov_b32 s22, %d" % (448 * 896))
        I("s_mov_b32 s23, 0x20000")
        self.pro_a = L
        L = []
        I = lambda t, **k: L.append(Ins(t, **k))
        if o.get("wpf", True):
            I("s_lshr_b32 s37, s2, 3")
            I("s_and_b32 s37, s37, 31")
            I("s_mul_i32 s37, s37, 98")
            I("s_mul_i32 s39, s3, 25")
            I("s_add_u32 s37, s37, s39")
            I("v_min_u32 v103, 24, v0")
            I("v_add_u32 v103, s37, v103")
            I("v_lshlrev_b32 v103, 7, v103")
            I("buffer_load_dword v108, v103, s[20:23], 0 offen")
        self.pro_pf = L
        L = []
        I = lambda t, **k: L.append(Ins(t, **k))
        I("s_mul_i32 s39, s3, 224")
        for par in (0, 1):
            if par == 0:
                I("v_mov_b32 v103, v0")
            else:
                I("v_subrev_u32 v103, 8, v0")
            I("v_cmp_gt_u32 vcc, 56, v103")
            I("v_mul_u32_u24 v104, 4682, v103")
            I("v_lshrrev_b32 v104, 16, v104")
            I("v_mul_u32_u24 v105, %d, v104" % (896 - 14 * 16))
            I("v_lshl_add_u32 v105, v103, 4, v105")
            I("v_add_u32 v105, s39, v105")
            I("v_mov_b32 v104, 0x40000000")
            I("v_cndmask_b32 v%d, v104, v105, vcc" % (V_WD + par))
            if par == 1:
                I("v_add_u32 v%d, 6144, v%d" % (V_WD + 1, V_WD + 1))
        I("v_add_u32 v%d, %d, v%d" % (V_WD + 2, 2 * 6144, V_WD))
        I("v_add_u32 v%d, %d, v%d" % (V_WD + 3, 2 * 6144, V_WD + 1))
        I("s_mul_i32 s38, s3, 12288")
        I("s_add_u32 s38, s38, %d" % STG)
        self.pro_w = L
        L = []
        I = lambda t, **k: L.append(Ins(t, **k))
        I("s_mov_b32 s28, s6"); I("s_mov_b32 s29, s7"); I("s_mov_b32 s30, 896"); I("s_mov_b32 s31, 0x20000")
        I("s_mov_b32 s32, s8"); I("s_mov_b32 s33, s9"); I("s_mov_b32 s34, 896"); I("s_mov_b32 s35, 0x20000")
        I("v_lshlrev_b32 v103, 4, v101")
        I("v_lshlrev_b32 v104, 3, v101")
        for (srd, base) in (("s[28:31]", V_D), ("s[32:35]", V_D + 14)):
            for i in range(3):
                I("buffer_load_dwordx4 %s, v103, %s, 0 offen offset:%d" % (vr(base + 4 * i, 4), srd, 256 * i), tag="gb")
            I("buffer_load_dwordx2 %s, v104, %s, 0 offen offset:768" % (vr(base + 12, 2), srd), tag="gb")
        self.pro_gb = L
        L = []
        I = lambda t, **k: L.append(Ins(t, **k))
        I("s_mov_b32 s24, s12"); I("s_mov_b32 s25, s13"); I("s_mov_b32 s26, %d" % (32768 * 896)); I("s_mov_b32 s27, 0x20000")
        I("s_mov_b32 s40, 0x3f803f80")
        I("s_mov_b32 s41, 0x00003f80")
        I("s_mov_b32 s42, 0x3f800000")
        I("s_mov_b32 s43, %s" % f32(-1.0 / 448))
        I("s_mov_b32 s44, %s" % f32(1.0 / 448))
        I("v_mov_b32 v%d, %s" % (V_EPS, f32(1e-5)))
        I("v_lshlrev_b32 v103, 10, v100")
        I("v_and_b32 v104, 1, v100")
        I("v_lshl_add_u32 v103, v104, 7, v103")
        I("v_bfe_u32 v104, v0, 2, 2")
        I("v_mul_u32_u24 v104, 224, v104")
        I("v_and_b32 v105, 3, v0")
        I("v_lshl_add_u32 v104, v105, 3, v104")
        I("v_add3_u32 v%d, v103, v104, s38" % V_TR)
        I("s_lshl_b32 s39, s3, 2")
        I("v_add_u32 v103, s39, v100")
        I("v_and_b32 v104, 7, v101")
        I("v_xor_b32 v104, v104, v103")
        I("v_and_b32 v105, 3, v101")
        I("v_lshl_add_u32 v104, v105, 4, v104")
        I("v_lshlrev_b32 v104, 4, v104")
        I("v_lshrrev_b32 v105, 2, v101")
        I("v_lshl_add_u32 v%d, v105, 10, v104" % V_AW)
        I("v_lshrrev_b32 v104, 1, v101")
        I("v_xor_b32 v105, v104, v103")
        I("v_and_b32 v104, 3, v104")
        I("v_lshl_add_u32 v105, v104, 4, v105")
        I("v_lshlrev_b32 v105, 4, v105")
        I("v_lshrrev_b32 v104, 3, v101")
        I("v_lshl_add_u32 v105, v104, 10, v105")
        I("v_and_b32 v104, 1, v101")
        I("v_lshl_add_u32 v105, v104, 3, v105")
        I("v_add_u32 v%d, %d, v105" % (V_AWT, 12 * 1024))
        I("v_mul_u32_u24 v103, %d, v103" % OSTR)
        I("v_add_u32 v103, %d, v103" % STG)
        I("v_lshl_add_u32 v%d, v101, 4, v103" % V_RB)
        I("v_lshl_add_u32 v%d, v101, 3, v103" % V_RBT)
        I("v_add_u32 v%d, 768, v%d" % (V_RBT, V_RBT))
        I("v_xor_b32 v103, v100, v101")
        I("v_lshl_add_u32 v103, v100, 4, v103")
        I("v_lshlrev_b32 v%d, 4, v103" % V_ARE)
        I("v_xor_b32 v%d, 64, v%d" % (V_ARO, V_ARE))
        I("v_mul_u32_u24 v103, %d, v101" % OSTR)
        I("v_lshl_add_u32 v103, v100, 3, v103")
        I("s_mul_i32 s39, s3, 224")
        I("s_add_u32 s39, s39, %d" % STG)
        I("v_add_u32 v%d, s39, v103" % V_OW)
        self.pro_addr = L
        L = []
        I = lambda t, **k: L.append(Ins(t, **k))
        first = True
        for (src, dst) in ((V_D, V_G), (V_D + 14, V_B)):
            for i in range(14):
                I("v_lshlrev_b32 v%d, 16, v%d" % (dst + 2 * i, src + i), need="gb" if first else ())
                first = False
                I("v_and_b32 v%d, 0xffff0000, v%d" % (dst + 2 * i + 1, src + i))
        self.pro_unpack = L

    def xb(self, p): return V_XR + 14 * (p % self.o.get("xring", 4))

    def xload(self, p):
        xb = self.xb(p); f = self.o.get("ldx", "")
        L = [Ins("s_add_u32 s45, s36, %d" % (p * 16 * 896))]
        for i in range(3):
            L.append(Ins("buffer_load_dwordx4 %s, v%d, s[16:19], s45 offen offset:%d %s" % (vr(xb + 4 * i, 4), V_X16, 256 * i, f), tag=("x", p)))
        L.append(Ins("buffer_load_dwordx2 %s, v%d, s[16:19], s45 offen %s" % (vr(xb + 12, 2), V_X8, f), tag=("x", p)))
        return L

    def ln(self, p):
        xb = self.xb(p)
        L = []
        I = lambda t, **k: L.append(Ins(t, **k))
        I("v_mov_b32 v%d, 0" % V_S)
        for i in range(14):
            I("v_dot2c_f32_bf16 v%d, s40, v%d" % (V_S, xb + i), need=[("x", p)] if i == 0 else ())
        for rot in (8, 4, 2, 1):
            I("v_add_f32_dpp v%d, v%d, v%d row_ror:%d row_mask:0xf bank_mask:0xf" % (V_S, V_S, V_S, rot))
        I("v_mul_f32 v%d, s43, v%d" % (V_M, V_S))
        for i in range(14):
            I("v_dot2_f32_bf16 v%d, v%d, s41, v%d" % (V_D + 2 * i, xb + i, V_M))
            I("v_dot2_f32_bf16 v%d, v%d, s42, v%d" % (V_D + 2 * i + 1, xb + i, V_M))
        for i in range(14):
            d = vr(V_D + 2 * i, 2); v = vr(V_V if i % 2 == 0 else V_V2, 2)
            if i < 2: I("v_pk_mul_f32 %s, %s, %s" % (v, d, d))
            else: I("v_pk_fma_f32 %s, %s, %s, %s" % (v, d, d, v))
        I("v_pk_add_f32 %s, %s, %s" % (vr(V_V, 2), vr(V_V, 2), vr(V_V2, 2)))
        I("v_add_f32 v%d, v%d, v%d" % (V_V, V_V, V_V + 1))
        for rot in (8, 4, 2, 1):
            I("v_add_f32_dpp v%d, v%d, v%d row_ror:%d row_mask:0xf bank_mask:0xf" % (V_V, V_V, V_V, rot))
        I("v_fma_f32 v%d, v%d, s44, v%d" % (V_V, V_V, V_EPS))
        I("v_rsq_f32 v%d, v%d" % (V_R, V_V))
        toff = (p % 4) * ATILE
        for i in range(14):
            d = vr(V_D + 2 * i, 2)
            I("v_pk_mul_f32 %s, %s, %s op_sel_hi:[1,0]" % (d, d, vr(V_R, 2)))
        for i in range(14):
            d = vr(V_D + 2 * i, 2)
            I("v_pk_fma_f32 %s, %s, %s, %s" % (d, d, vr(V_G + 2 * i, 2), vr(V_B + 2 * i, 2)))
        for i in range(14):
            I("v_cvt_pk_bf16_f32 v%d, v%d, v%d" % (xb + i, V_D + 2 * i, V_D + 2 * i + 1))
            if i % 4 == 3:
                I("ds_write_b128 v%d, %s offset:%d" % (V_AW, vr(xb + i - 3, 4), toff + 4096 * (i // 4)), tag=("aw", p))
        I("ds_write_b64 v%d, %s offset:%d" % (V_AWT, vr(xb + 12, 2), toff), tag=("aw", p))
        if p == 3:
            I("v_add_u32 v%d, %d, v%d" % (V_AW, 4 * ATILE, V_AW))
            I("v_add_u32 v%d, %d, v%d" % (V_AWT, 4 * ATILE, V_AWT))
        return L

    def wissue(self, hb):
        s, h = hb // 2, hb % 2
        slot = hb % 3
        L = [Ins("s_add_u32 m0, s38, %d" % (slot * 4096), need=[("tr", hb - 3)] if hb >= 3 else ()),
             Ins("s_mov_b32 s37, %d" % ((32 * s + 4 * h) * 896))]
        for g in range(4):
            L.append(Ins("buffer_load_dwordx4 v%d, s[20:23], s37 offen offset:%d lds" % (V_WD + g, g * 1024), tag=("w", hb)))
        return L

    def wcons(self, hb):
        s, h = hb // 2, hb % 2
        slot = hb % 3
        return [Ins("ds_read_b64_tr_b16 %s, v%d offset:%d" % (wreg(s, j, 2 * h, 2), V_TR, slot * 4096 + 32 * j),
                    tag=("tr", hb), need=[("w", hb)] if j == 0 else ()) for j in range(7)]

    def xfread(self, t, s):
        n = t * 14 + s
        return Ins("ds_read_b128 %s, v%d offset:%d" % (vr(V_XF + 4 * (n % 4), 4), V_ARO if s % 2 else V_ARE, (t % 4) * ATILE + s * 1024), tag=("xf", n))

    def mfmas(self, t, s):
        n = t * 14 + s
        acc = ACC[t % 2]
        L = []
        for j in range(7):
            c = "0" if s == 0 else vr(acc + 4 * j, 4)
            need = [("xf", n)] if j == 0 else []
            L.append(Ins("v_mfma_f32_16x16x32_bf16 %s, %s, %s, %s" % (vr(acc + 4 * j, 4), wreg(s, j), vr(V_XF + 4 * (n % 4), 4), c), need=need))
        return L

    def epi1(self, t):
        acc = ACC[t % 2]; slot = t % 2
        L = []
        for j in range(7):
            L.append(Ins("v_cvt_pk_bf16_f32 v%d, v%d, v%d" % (V_P + 2 * j, acc + 4 * j, acc + 4 * j + 1)))
            L.append(Ins("v_cvt_pk_bf16_f32 v%d, v%d, v%d" % (V_P + 2 * j + 1, acc + 4 * j + 2, acc + 4 * j + 3)))
            L.append(Ins("ds_write_b64 v%d, %s offset:%d" % (V_OW, vr(V_P + 2 * j, 2), slot * OSLOT + 32 * j), tag=("ow", t)))
        return L

    def epi2(self, t):
        slot = t % 2; f = self.o.get("st", "")
        L = [Ins("s_barrier", need=[("ow", t)])]
        for i in range(3):
            L.append(Ins("ds_read_b128 %s, v%d offset:%d" % (vr(V_O + 4 * i, 4), V_RB, slot * OSLOT + 256 * i), tag=("rb", t, i)))
        L.append(Ins("ds_read_b64 %s, v%d offset:%d" % (vr(V_O + 12, 2), V_RBT, slot * OSLOT), tag=("rb", t, 3)))
        return L

    def epi3(self, t):
        f = self.o.get("st", "")
        L = [Ins("s_add_u32 s45, s36, %d" % (t * 16 * 896))]
        for i in range(3):
            L.append(Ins("buffer_store_dwordx4 %s, v%d, s[24:27], s45 offen offset:%d %s" % (vr(V_O + 4 * i, 4), V_X16, 256 * i, f), need=[("rb", t, i)], tag=("st", t)))
        L.append(Ins("buffer_store_dwordx2 %s, v%d, s[24:27], s45 offen %s" % (vr(V_O + 12, 2), V_X8, f), need=[("rb", t, 3)], tag=("st", t)))
        return L

    def stamp(self, i):
        if not self.o.get("stamps"): return []
        return [Ins("s_memrealtime s[%d:%d]" % (60 + 2 * i, 61 + 2 * i), tag=("stamp", i))]

    def build(self):
        o = self.o
        self.prologue()
        S = []
        S += self.stamp(0)
        S += self.pro_a
        S += self.xload(0)
        S += self.pro_pf + self.pro_w
        S += self.pro_gb
        S += self.wissue(0) + self.xload(1) + self.wissue(1) + self.wissue(2) + self.xload(2)
        S += self.pro_addr + self.pro_unpack
        hb = 0
        nA = 18
        for p in range(8):
            body = self.ln(p)
            fill = []
            k = (nA * (p + 1)) // 8 - (nA * p) // 8
            groups = []
            for _ in range(k):
                groups.append(self.wcons(hb) + (self.wissue(hb + 3) if hb + 3 < 28 else []))
                hb += 1
            n = len(body)
            pos = [(i + 1) * n // (k + 1) for i in range(k)]
            out = []
            gi = 0
            for i, ins in enumerate(body):
                while gi < k and pos[gi] == i:
                    out += groups[gi]; gi += 1
                out.append(ins)
            S += out
            if p + 3 < 8: S += self.xload(p + 3)
        S += self.stamp(1)
        while hb < 28:
            S += self.wcons(hb) + (self.wissue(hb + 3) if hb + 3 < 28 else [])
            hb += 1
        S += [Ins("s_barrier", need=["ALLLG"])]
        S += self.stamp(2)
        PF = 3
        for s in range(PF): S.append(self.xfread(0, s))
        for t in range(8):
            main = []
            for s in range(14):
                m = self.mfmas(t, s)
                n = t * 14 + s + PF
                if n < 8 * 14:
                    tt, ss = divmod(n, 14)
                    extra = []
                    if tt == 4 and ss == 0:
                        extra.append(Ins("v_add_u32 v%d, %d, v%d" % (V_ARE, 4 * ATILE, V_ARE)))
                    if tt == 4 and ss == 1:
                        extra.append(Ins("v_add_u32 v%d, %d, v%d" % (V_ARO, 4 * ATILE, V_ARO)))
                    extra.append(self.xfread(tt, ss))
                    m = m[:1] + extra + m[1:]
                main += m
            if t > 0:
                n = len(main)
                main = merge(main, self.epi3(t - 1), int(n * 0.62), int(n * 0.85))
                main = merge(main, self.epi2(t - 1), int(n * 0.45), int(n * 0.55))
                main = merge(main, self.epi1(t - 1), 8, int(n * 0.35))
            S += main
        S += self.epi1(7) + self.epi2(7) + self.epi3(7)
        S += self.stamp(3)
        if o.get("stamps") and o.get("dbg"):
            S += [Ins("s_nop 0", need=["ALLVM"])]
            S += self.stamp(4)
            S += [Ins("s_mov_b32 s28, s14", need=["ALLLG"]), Ins("s_mov_b32 s29, s15"), Ins("s_mov_b32 s30, 256"), Ins("s_mov_b32 s31, 0x20000")]
            S += [Ins("s_mov_b64 exec, 1"), Ins("v_mov_b32 v1, 0")]
            for i in range(5):
                S += [Ins("v_mov_b32 v%d, s%d" % (16 + i, 60 + 2 * i)), Ins("v_not_b32 v%d, s%d" % (24 + i, 60 + 2 * i))]
            for i in range(5):
                S += [Ins("buffer_atomic_umax v%d, v1, s[28:31], 0 offen offset:%d" % (16 + i, 4 * i)),
                      Ins("buffer_atomic_umax v%d, v1, s[28:31], 0 offen offset:%d" % (24 + i, 32 + 4 * i))]
        elif o.get("stamps"):
            S += [Ins("s_nop 0", need=["ALLVM"])]
            S += self.stamp(4)
            S += [Ins("s_mov_b32 s28, s14", need=["ALLLG"]), Ins("s_mov_b32 s29, s15"), Ins("s_mov_b32 s30, 0x100000"), Ins("s_mov_b32 s31, 0x20000")]
            for i in range(8):
                S += [Ins("v_mov_b32 v%d, s%d" % (16 + 2 * i, 60 + 2 * min(i, 4))), Ins("v_mov_b32 v%d, s%d" % (17 + 2 * i, 61 + 2 * min(i, 4)))]
            S += [Ins("s_lshl_b32 s39, s2, 2"), Ins("s_add_u32 s39, s39, s3"), Ins("s_lshl_b32 s39, s39, 6"), Ins("v_mov_b32 v1, s39"), Ins("s_mov_b64 exec, 1")]
            for i in range(4):
                S.append(Ins("buffer_store_dwordx4 v[%d:%d], v1, s[28:31], 0 offen offset:%d" % (16 + 4 * i, 19 + 4 * i, 16 * i)))
        lin = linearize(S)
        a = Asm()
        a("s_cmp_ge_u32 s2, 256")
        a("s_cbranch_scc1 L_end")
        for i in lin: a(i.text)
        a.label("L_end")
        a("s_endpgm")
        return a.text(256, 256, 163840)

if __name__ == "__main__":
    import json
    opt = json.loads(sys.argv[2]) if len(sys.argv) > 2 else {}
    open(sys.argv[1], "w").write(G(opt).build())
```
